```python
import torch

def _softmax(x, axis=-1):
    return torch.softmax(x, dim=axis)
def _gelu(x):
    return torch.nn.functional.gelu(x, approximate="tanh")
def _silu(x):
    return torch.nn.functional.silu(x)
def _sigmoid(x):
    return torch.sigmoid(x)
def _layernorm(x, axis=-1, eps=1e-5):
    m = x.mean(dim=axis, keepdim=True)
    v = x.var(dim=axis, keepdim=True, unbiased=False)
    return (x - m) / torch.sqrt(v + eps)
def _scatter_add(tgt, idx, src, axis=0):
    return tgt.clone().index_add_(axis, idx, src)
def _segment_sum(src, seg, n):
    out = torch.zeros((n,) + src.shape[1:], dtype=src.dtype)
    return out.index_add_(0, seg, src)
def _pad(x, pw):
    flat = tuple(v for pair in reversed(pw) for v in pair)
    return torch.nn.functional.pad(x, flat)

kernel_name = 'interleave_layers__spectral_gfnet__glu_gated_swiglu__prompt'

def setup_inputs():

    _w = (lambda a: (lambda t: t.to(torch.bfloat16) if t.is_floating_point() else t)(torch.as_tensor(a)))
    def _A_setup():
        B, S, D = 1, 2048, 640
        Df = D // 2 + 1
        return {
            "x": _w((lambda *s: torch.randn(*s, dtype=torch.bfloat16) * 0.05)(B, S, D)),
            "w_r": _w((lambda *s: torch.randn(*s, dtype=torch.bfloat16) * 0.4)(S, Df) * 0.02),
            "w_i": _w((lambda *s: torch.randn(*s, dtype=torch.bfloat16) * 0.4)(S, Df) * 0.02),
        }
    _A_in = _A_setup()

    def _B_setup():
        B, S, D, F = 1, 2048, 640, 1728
        return {
            "x": _w((lambda *s: torch.randn(*s, dtype=torch.bfloat16) * 0.05)(B, S, D)),
            "w1": _w((lambda *s: torch.randn(*s, dtype=torch.bfloat16) * 0.2)(D, F) * (2.0 / D) ** 0.5),
            "w3": _w((lambda *s: torch.randn(*s, dtype=torch.bfloat16) * 0.2)(D, F) * (2.0 / D) ** 0.5),
            "w2": _w((lambda *s: torch.randn(*s, dtype=torch.bfloat16) * 0.2)(F, D) * (2.0 / F) ** 0.5),
        }
    _B_in = _B_setup()

    return {
        "A_x": _A_in["x"],
        "A_w_r": _A_in["w_r"],
        "A_w_i": _A_in["w_i"],
        "B_x": _B_in["x"],
        "B_w1": _B_in["w1"],
        "B_w3": _B_in["w3"],
        "B_w2": _B_in["w2"],
    }

def reference(A_x, A_w_r, A_w_i, B_x, B_w1, B_w3, B_w2):
    def _A_ref(x, w_r, w_i):
        B, S, D = x.shape
        X = (lambda x, axes=(-2,-1): torch.fft.rfft2(x.float(), dim=axes))(x, axes=(-2, -1))
        W = w_r + 1j * w_i
        X = X * W
        y = (lambda x, s, axes=(-2,-1): torch.fft.irfft2(x, s=s, dim=axes).to(torch.bfloat16))(X, (S, D), axes=(-2, -1))
        return y

    def _B_ref(x, w1, w3, w2):
        gate = torch.einsum("bsd,df->bsf", x, w1)
        up = torch.einsum("bsd,df->bsf", x, w3)
        h = _silu(gate) * up
        out = torch.einsum("bsf,fd->bsd", h, w2)
        return out

    x = A_x
    x = x + _A_ref(_layernorm(x, axis=-1), A_w_r, A_w_i)
    x = x + _B_ref(_layernorm(x, axis=-1), B_w1, B_w3, B_w2)
    x = x + _A_ref(_layernorm(x, axis=-1), A_w_r, A_w_i)
    x = x + _B_ref(_layernorm(x, axis=-1), B_w1, B_w3, B_w2)
    return x
```

```python
import re, struct, math

def f2u(x):
    return struct.unpack('<I', struct.pack('<f', float(x)))[0]

def lit(x):
    return "0x%08x" % f2u(x)

TRANS = ('v_exp_f32','v_log_f32','v_rcp_f32','v_rsq_f32','v_sqrt_f32','v_sin_f32','v_cos_f32','v_rcp_iflag_f32')

_reg_re = re.compile(r'^(-|abs\()?([vsa])(\d+)\)?$')
_rng_re = re.compile(r'^([vsa])\[(\d+):(\d+)\]$')

def regs_of(op):
    op = op.strip()
    m = _reg_re.match(op)
    if m:
        return [(m.group(2), int(m.group(3)))]
    m = _rng_re.match(op)
    if m:
        return [(m.group(1), i) for i in range(int(m.group(2)), int(m.group(3)) + 1)]
    if op in ('vcc', 'vcc_lo', 'vcc_hi'):
        return [('c', 0)]
    if op == 'exec':
        return [('x', 0)]
    if op == 'm0':
        return [('m', 0)]
    return []

class Kernel:
    def __init__(self, name):
        self.name = name
        self.lines = []
        self.n = 0
        self.wr = {}
        self.rdC = {}
        self.maxv = 0
        self.maxs = 0
        self.maxa = -1

    def raw(self, s):
        self.lines.append(s)

    def comment(self, s):
        self.lines.append("    ; " + s)

    def label(self, l):
        self.lines.append(l + ":")

    def nop(self, k):
        while k > 0:
            c = min(k, 16)
            self.lines.append("    s_nop %d" % (c - 1))
            self.n += c
            k -= c

    def _track(self, rl):
        for t, i in rl:
            if t == 'v': self.maxv = max(self.maxv, i + 1)
            elif t == 's': self.maxs = max(self.maxs, i + 1)
            elif t == 'a': self.maxa = max(self.maxa, i + 1)

    def I(self, text):
        text = text.strip()
        mn, _, rest = text.partition(' ')
        ops = [o.strip() for o in rest.split(',')] if rest else []
        clean = []
        for o in ops:
            w = o.split()
            clean.append(w[0] if w else '')
        base = mn.replace('_e32', '').replace('_e64', '').replace('_dpp', '')
        is_valu = mn.startswith('v_') and not mn.startswith('v_mfma')
        is_mfma = mn.startswith('v_mfma')
        is_vmem = mn.startswith('buffer_') or mn.startswith('global_')
        is_ds = mn.startswith('ds_')
        is_salu = mn.startswith('s_')
        is_dpp = ('dpp' in mn) or ('row_' in text) or ('quad_perm' in text)
        is_perm = mn.startswith('v_permlane')
        is_rdlane = mn in ('v_readlane_b32', 'v_readfirstlane_b32', 'v_writelane_b32')
        writes, reads = [], []
        if is_mfma:
            writes = regs_of(clean[0]); reads = regs_of(clean[1]) + regs_of(clean[2]) + regs_of(clean[3])
        elif is_valu:
            if mn.startswith('v_cmp'):
                writes = regs_of(clean[0]); reads = sum([regs_of(c) for c in clean[1:]], [])
                if mn.startswith('v_cmpx'): writes = writes + [('x', 0)]
            elif is_perm:
                writes = regs_of(clean[0]) + regs_of(clean[1]); reads = writes[:]
            else:
                writes = regs_of(clean[0]); reads = sum([regs_of(c) for c in clean[1:]], [])
                if base.startswith('v_fmac') or base.startswith('v_pk_fmac') or is_dpp or mn == 'v_writelane_b32':
                    reads = reads + writes
                if '_co_' in mn and len(clean) > 1 and clean[1] == 'vcc':
                    writes = writes + [('c', 0)]
                if base in ('v_div_fmas_f32',): reads = reads + [('c', 0)]
        elif is_vmem:
            if 'load' in mn and ' lds' not in text:
                writes = regs_of(clean[0]); reads = sum([regs_of(c) for c in clean[1:]], [])
            else:
                reads = sum([regs_of(c) for c in clean], [])
        elif is_ds:
            if 'read' in mn or 'swizzle' in mn or 'permute' in mn:
                writes = regs_of(clean[0]); reads = sum([regs_of(c) for c in clean[1:]], [])
            else:
                reads = sum([regs_of(c) for c in clean], [])
        need = 0
        for r in reads:
            w = self.wr.get(r)
            if not w: continue
            clk, cls, ex = w
            d = self.n - clk
            req = 0
            if cls == 'trans' and (is_valu or is_mfma): req = max(req, 1)
            if cls in ('valu', 'trans'):
                if r[0] == 'v' or r[0] == 'a':
                    if is_rdlane: req = max(req, 1)
                    if is_dpp or is_perm: req = max(req, 2)
                    if is_mfma: req = max(req, 2)
                elif r[0] in ('s', 'c'):
                    if is_valu or is_mfma: req = max(req, 2)
                    if is_vmem: req = max(req, 5)
                    if is_rdlane: req = max(req, 4)
                elif r[0] == 'x':
                    if is_mfma: req = max(req, 4)
                    if is_dpp: req = max(req, 5)
            if cls == 'mfma':
                passes = ex
                if is_mfma:
                    isC = r in regs_of(clean[3])
                    isAB = r in regs_of(clean[1]) + regs_of(clean[2])
                    if isAB: req = max(req, {4: 8, 8: 12}[passes])
                    elif isC and clean[3] != None:
                        pass
                else:
                    req = max(req, {4: 8, 8: 12}[passes])
            need = max(need, req - d)
        for r in writes:
            w = self.wr.get(r)
            if w and w[1] == 'mfma' and not is_mfma:
                need = max(need, {4: 8, 8: 12}[w[2]] - (self.n - w[0]))
            c = self.rdC.get(r)
            if c and is_valu:
                need = max(need, {4: 3, 8: 7}[c[1]] - (self.n - c[0]))
        if need > 0:
            self.nop(need)
        self.lines.append("    " + text)
        self.n += 1
        cls = 'mfma' if is_mfma else ('trans' if base in TRANS else ('valu' if is_valu else 'other'))
        for r in writes:
            if is_mfma:
                self.wr[r] = (self.n, 'mfma', 8 if '32x32' in mn else 4)
            else:
                self.wr[r] = (self.n, cls, None)
        if is_mfma:
            for r in regs_of(clean[3]):
                self.rdC[r] = (self.n, 8 if '32x32' in mn else 4)
        self._track(writes + reads)

    def text(self, vgprs=None, extra_desc=""):
        nv = vgprs or self.maxv
        nv = max(nv, 8)
        acc = (nv + 3) // 4 * 4
        tot = acc + (self.maxa if self.maxa > 0 else 0)
        out = []
        out.append(".globl %s" % self.name)
        out.append(".p2align 8")
        out.append(".type %s,@function" % self.name)
        out.append("%s:" % self.name)
        out += self.lines
        out.append("    s_endpgm")
        desc = []
        desc.append(".amdhsa_kernel %s" % self.name)
        desc.append("  .amdhsa_next_free_vgpr %d" % tot)
        desc.append("  .amdhsa_next_free_sgpr %d" % max(self.maxs, 16))
        desc.append("  .amdhsa_accum_offset %d" % acc)
        desc.append("  .amdhsa_group_segment_fixed_size 0")
        desc.append("  .amdhsa_kernarg_size 80")
        desc.append("  .amdhsa_user_sgpr_count 2")
        desc.append("  .amdhsa_user_sgpr_kernarg_segment_ptr 1")
        desc.append("  .amdhsa_system_sgpr_workgroup_id_x 1")
        if extra_desc: desc.append(extra_desc)
        desc.append(".end_amdhsa_kernel")
        return "\n".join(out), "\n".join(desc)
```

```python
import math, cmath
from asmgen import lit

class Pool:
    def __init__(self, lo, hi):
        self.free = list(range(lo, hi))
    def a(self):
        return self.free.pop(0)
    def a2(self):
        for i, r in enumerate(self.free):
            if r % 2 == 0 and (r + 1) in self.free:
                self.free.remove(r); self.free.remove(r + 1)
                return r
        raise RuntimeError("no pair")
    def f(self, *rs):
        for r in rs:
            assert r not in self.free
            self.free.append(r)
        self.free.sort()

class C:
    def __init__(self, r, i, sr=1, si=1):
        self.r, self.i, self.sr, self.si = r, i, sr, si

def _m(s, r):
    return ("-v%d" if s < 0 else "v%d") % r

class FFT:
    def __init__(self, k, pool):
        self.k, self.p = k, pool
    def free(self, c):
        self.p.f(c.r, c.i)
    def addsub(self, a, b, sub, dst=None):
        k = self.k
        sb = -1 if sub else 1
        if dst is None:
            dr, di = self.p.a(), self.p.a()
        else:
            dr, di = dst
        k.I("v_add_f32 v%d, %s, %s" % (dr, _m(a.sr, a.r), _m(b.sr * sb, b.r)))
        k.I("v_add_f32 v%d, %s, %s" % (di, _m(a.si, a.i), _m(b.si * sb, b.i)))
        return C(dr, di)
    def bfly(self, a, b):
        d = self.addsub(a, b, True)
        s = self.addsub(a, b, False, dst=(a.r, a.i))
        self.free(b)
        return s, d
    def rot(self, a, w):
        k = self.k
        eps = 1e-12
        if abs(w - 1) < eps: return a
        if abs(w + 1) < eps: return C(a.r, a.i, -a.sr, -a.si)
        if abs(w + 1j) < eps: return C(a.i, a.r, a.si, -a.sr)
        if abs(w - 1j) < eps: return C(a.i, a.r, -a.si, a.sr)
        c, s = w.real, w.imag
        tr, ti = self.p.a(), self.p.a()
        k.I("v_mul_f32 v%d, %s, v%d" % (tr, lit(c * a.sr), a.r))
        k.I("v_mul_f32 v%d, %s, v%d" % (ti, lit(s * a.sr), a.r))
        k.I("v_fmac_f32 v%d, %s, v%d" % (tr, lit(-s * a.si), a.i))
        k.I("v_fmac_f32 v%d, %s, v%d" % (ti, lit(c * a.si), a.i))
        self.free(a)
        return C(tr, ti)
    def twv(self, a, wr, wi):
        k = self.k
        sg = a.sr * a.si
        tr, ti = self.p.a(), self.p.a()
        k.I("v_mul_f32 v%d, v%d, v%d" % (tr, a.r, wr))
        k.I("v_mul_f32 v%d, v%d, v%d" % (ti, a.r, wi))
        k.I("v_fma_f32 v%d, %s, v%d, v%d" % (tr, _m(-sg, a.i), wi, tr))
        k.I("v_fma_f32 v%d, %s, v%d, v%d" % (ti, _m(sg, a.i), wr, ti))
        self.free(a)
        return C(tr, ti, a.sr, a.sr)
    def lin2(self, c1, t1, c2, t2, base=None):
        k = self.k
        out = []
        for comp in ('r', 'i'):
            d = self.p.a()
            r1, s1 = getattr(t1, comp), getattr(t1, 's' + comp)
            r2, s2 = getattr(t2, comp), getattr(t2, 's' + comp)
            if base is None:
                k.I("v_mul_f32 v%d, %s, v%d" % (d, lit(c1 * s1), r1))
            else:
                rb, sb = getattr(base, comp), getattr(base, 's' + comp)
                k.I("v_mov_b32 v%d, v%d" % (d, rb)) if sb > 0 else k.I("v_sub_f32 v%d, 0, v%d" % (d, rb))
                k.I("v_fmac_f32 v%d, %s, v%d" % (d, lit(c1 * s1), r1))
            k.I("v_fmac_f32 v%d, %s, v%d" % (d, lit(c2 * s2), r2))
            out.append(d)
        return C(out[0], out[1])
    def dft5(self, x, sign):
        x0, x1, x2, x3, x4 = x
        t1 = self.addsub(x1, x4, False); t3 = self.addsub(x1, x4, True)
        t2 = self.addsub(x2, x3, False); t4 = self.addsub(x2, x3, True)
        for c in (x1, x2, x3, x4): self.free(c)
        c1, c2 = math.cos(2 * math.pi / 5), math.cos(4 * math.pi / 5)
        s1, s2 = math.sin(2 * math.pi / 5), math.sin(4 * math.pi / 5)
        a1 = self.lin2(c1, t1, c2, t2, x0); a2 = self.lin2(c2, t1, c1, t2, x0)
        b1 = self.lin2(s1, t3, s2, t4); b2 = self.lin2(s2, t3, -s1, t4)
        s = self.addsub(t1, t2, False)
        X0 = self.addsub(x0, s, False)
        for c in (t1, t2, t3, t4, s, x0): self.free(c)
        ib1 = self.rot(b1, 1j * sign); ib2 = self.rot(b2, 1j * sign)
        X1 = self.addsub(a1, ib1, False); X4 = self.addsub(a1, ib1, True)
        X2 = self.addsub(a2, ib2, False); X3 = self.addsub(a2, ib2, True)
        for c in (a1, a2, ib1, ib2): self.free(c)
        return [X0, X1, X2, X3, X4]
    def dft(self, x, sign):
        N = len(x)
        if N == 1: return x
        if N == 2:
            s, d = self.bfly(x[0], x[1]); return [s, d]
        if N == 5: return self.dft5(x, sign)
        p = 2 if N % 2 == 0 else 5
        q = N // p
        Y = [self.dft(x[r::p], sign) for r in range(p)]
        X = [None] * N
        for kk in range(q):
            col = [self.rot(Y[r][kk], cmath.exp(sign * 2j * math.pi * r * kk / N)) for r in range(p)]
            o = self.dft(col, sign)
            for s in range(p): X[kk + q * s] = o[s]
        return X
    def fix(self, c):
        k = self.k
        if c.sr < 0: k.I("v_sub_f32 v%d, 0, v%d" % (c.r, c.r))
        if c.si < 0: k.I("v_sub_f32 v%d, 0, v%d" % (c.i, c.i))
        return C(c.r, c.i)
    def twiddle(self, kf, frac):
        k = self.k
        t, wr, wi = self.p.a(), self.p.a(), self.p.a()
        k.I("v_mul_f32 v%d, %s, v%d" % (t, lit(frac), kf))
        k.I("v_cos_f32 v%d, v%d" % (wr, t))
        k.I("v_sin_f32 v%d, v%d" % (wi, t))
        self.p.f(t)
        return wr, wi
```

```python
import sys, math
sys.path.insert(0, 'work')
from asmgen import Kernel, lit
from fftgen import Pool, C, FFT

WS_X1T = 0
WS_XRES = 8 << 20
WS_XN = 12 << 20
WS_H = 16 << 20
WS_X2 = 24 << 20
NB_X = 2048 * 640 * 2
NB_X1T = 321 * 2048 * 8
NB_H = 2048 * 1728 * 2

def srd(k, d, lo, hi, nbytes):
    k.I("s_mov_b32 s%d, s%d" % (d, lo))
    k.I("s_and_b32 s%d, s%d, 0xffff" % (d + 1, hi))
    k.I("s_mov_b32 s%d, 0x%x" % (d + 2, nbytes))
    k.I("s_mov_b32 s%d, 0x00020000" % (d + 3))

def add64(k, lo, hi, imm):
    if imm:
        k.I("s_add_u32 s%d, s%d, 0x%x" % (lo, lo, imm))
        k.I("s_addc_u32 s%d, s%d, 0" % (hi, hi))

def wave_allreduce(k, regs, tmp):
    for pat in ("quad_perm:[1,0,3,2]", "quad_perm:[2,3,0,1]", "row_ror:4", "row_ror:8"):
        for r in regs:
            k.I("v_add_f32_dpp v%d, v%d, v%d %s row_mask:0xf bank_mask:0xf" % (r, r, r, pat))
    for op in ("v_permlane16_swap_b32", "v_permlane32_swap_b32"):
        for r, t in zip(regs, tmp):
            k.I("v_mov_b32 v%d, v%d" % (t, r))
        for r, t in zip(regs, tmp):
            k.I("%s v%d, v%d" % (op, t, r))
        for r, t in zip(regs, tmp):
            k.I("v_add_f32 v%d, v%d, v%d" % (r, r, t))

def bf16r(k, r, t):
    k.I("v_cvt_pk_bf16_f32 v%d, v%d, v%d" % (t, r, r))
    k.I("v_lshlrev_b32 v%d, 16, v%d" % (r, t))

def layernorm_rows(k, rows, P):
    n = len(rows)
    s = [P.a() for _ in range(n)]; t = [P.a() for _ in range(n)]
    for i, R in enumerate(rows):
        k.I("v_add_f32 v%d, v%d, v%d" % (s[i], R[0], R[1]))
        for r in R[2:]:
            k.I("v_add_f32 v%d, v%d, v%d" % (s[i], s[i], r))
    wave_allreduce(k, s, t)
    q = [P.a() for _ in range(n)]
    d = P.a()
    for i, R in enumerate(rows):
        k.I("v_mul_f32 v%d, %s, v%d" % (s[i], lit(1.0 / 640), s[i]))
        for j, r in enumerate(R):
            k.I("v_sub_f32 v%d, v%d, v%d" % (d, r, s[i]))
            if j == 0: k.I("v_mul_f32 v%d, v%d, v%d" % (q[i], d, d))
            else: k.I("v_fmac_f32 v%d, v%d, v%d" % (q[i], d, d))
    wave_allreduce(k, q, t)
    for i, R in enumerate(rows):
        k.I("v_mul_f32 v%d, %s, v%d" % (q[i], lit(1.0 / 640), q[i]))
        bf16r(k, q[i], d)
        k.I("v_add_f32 v%d, %s, v%d" % (q[i], lit(1e-5), q[i]))
        bf16r(k, q[i], d)
        k.I("v_sqrt_f32 v%d, v%d" % (q[i], q[i]))
        bf16r(k, q[i], d)
        k.I("v_rcp_f32 v%d, v%d" % (q[i], q[i]))
        bf16r(k, s[i], d)
        for r in R:
            k.I("v_sub_f32 v%d, v%d, v%d" % (r, r, s[i]))
            bf16r(k, r, d)
            k.I("v_mul_f32 v%d, v%d, v%d" % (r, r, q[i]))
            bf16r(k, r, d)
    P.f(*s); P.f(*t); P.f(*q); P.f(d)

def to_pair(k, P, c):
    if c.r % 2 == 0 and c.i == c.r + 1 and c.sr > 0 and c.si > 0:
        return c
    b = P.a2()
    k.I(("v_mov_b32 v%d, v%d" if c.sr > 0 else "v_sub_f32 v%d, 0, v%d") % (b, c.r))
    k.I(("v_mov_b32 v%d, v%d" if c.si > 0 else "v_sub_f32 v%d, 0, v%d") % (b + 1, c.i))
    P.f(c.r, c.i)
    return C(b, b + 1)

def lds_read_c(k, P, addr, off):
    b = P.a2()
    k.I("ds_read_b64 v[%d:%d], v%d offset:%d" % (b, b + 1, addr, off))
    return C(b, b + 1)

def lds_write_c(k, P, addr, off, c):
    c = to_pair(k, P, c)
    k.I("ds_write_b64 v%d, v[%d:%d] offset:%d" % (addr, c.r, c.r + 1, off))
    P.f(c.r, c.i)

def div_magic(k, dst, src, mul, sh):
    k.I("v_mul_u32_u24 v%d, %d, v%d" % (dst, mul, src))
    k.I("v_lshrrev_b32 v%d, %d, v%d" % (dst, sh, dst))

def gen_k1(name, src_ws):
    k = Kernel(name)
    k.I("s_cmp_ge_u32 s2, 256")
    k.I("s_cbranch_scc1 %s_end" % name)
    k.I("s_load_dwordx2 s[4:5], s[0:1], %d" % (72 if src_ws else 0))
    k.I("s_load_dwordx2 s[6:7], s[0:1], 72")
    k.I("v_lshrrev_b32 v1, 6, v0")
    k.I("v_readfirstlane_b32 s20, v1")
    k.I("v_and_b32 v2, 63, v0")
    k.I("s_waitcnt lgkmcnt(0)")
    if src_ws: add64(k, 4, 5, WS_X2)
    srd(k, 8, 4, 5, NB_X)
    add64(k, 6, 7, WS_X1T)
    srd(k, 12, 6, 7, NB_X1T)
    P = Pool(4, 120)
    F = FFT(k, P)
    k.I("s_cmp_ge_u32 s20, 4")
    k.I("s_cbranch_scc1 %s_p2" % name)
    k.I("s_mul_i32 s21, s2, 10240")
    k.I("s_mul_i32 s22, s20, 2560")
    k.I("s_add_u32 s21, s21, s22")
    k.I("v_lshlrev_b32 v3, 1, v2")
    ra = [P.a() for _ in range(10)]; rb = [P.a() for _ in range(10)]
    for m in range(10):
        k.I("buffer_load_ushort v%d, v3, s[8:11], s21 offen offset:%d" % (ra[m], 128 * m))
        k.I("buffer_load_ushort v%d, v3, s[8:11], s21 offen offset:%d" % (rb[m], 1280 + 128 * m))
    k.I("s_waitcnt vmcnt(0)")
    for r in ra + rb:
        k.I("v_lshlrev_b32 v%d, 16, v%d" % (r, r))
    layernorm_rows(k, [ra, rb], P)
    x = [C(ra[m], rb[m]) for m in range(10)]
    X = F.dft(x, -1)
    a1 = P.a()
    k.I("v_mul_u32_u24 v%d, 80, v2" % a1)
    k.I("s_mul_i32 s22, s20, 5120")
    k.I("v_add_u32 v%d, s22, v%d" % (a1, a1))
    for m in range(10):
        lds_write_c(k, P, a1, 8 * m, X[m])
    P.f(a1)
    k.label("%s_p2" % name)
    vp, vj, vq, vk, rd, wr2, wr3, kf, jf = [P.a() for _ in range(9)]
    div_magic(k, vp, 0, 205, 14)
    k.I("v_mul_u32_u24 v%d, 80, v%d" % (vj, vp))
    k.I("v_sub_u32 v%d, v0, v%d" % (vj, vj))
    div_magic(k, vq, vj, 205, 11)
    k.I("v_mul_u32_u24 v%d, 10, v%d" % (vk, vq))
    k.I("v_sub_u32 v%d, v%d, v%d" % (vk, vj, vk))
    k.I("v_mul_u32_u24 v%d, 5120, v%d" % (vp, vp))
    k.I("v_lshlrev_b32 v%d, 3, v%d" % (rd, vj))
    k.I("v_add_u32 v%d, v%d, v%d" % (rd, rd, vp))
    k.I("v_mul_u32_u24 v%d, 80, v%d" % (wr2, vq))
    k.I("v_add_u32 v%d, v%d, v%d" % (wr2, wr2, vk))
    k.I("v_lshlrev_b32 v%d, 3, v%d" % (wr2, wr2))
    k.I("v_add_u32 v%d, v%d, v%d" % (wr2, wr2, vp))
    k.I("v_cvt_f32_u32 v%d, v%d" % (kf, vk))
    k.I("v_cvt_f32_u32 v%d, v%d" % (jf, vj))
    k.I("s_waitcnt lgkmcnt(0)")
    k.I("s_barrier")
    for (ph, src_off, dst_off, tf, den, wbase, wstep) in ((2, 0, 20480, kf, 80, wr2, 80), (3, 20480, 0, jf, 640, rd, 640)):
        x = [lds_read_c(k, P, rd, src_off + 640 * m) for m in range(8)]
        k.I("s_waitcnt lgkmcnt(0)")
        for m in range(1, 8):
            wr, wi = F.twiddle(tf, -m / den)
            x[m] = F.twv(x[m], wr, wi)
            P.f(wr, wi)
        X = F.dft(x, -1)
        for m in range(8):
            lds_write_c(k, P, wbase, dst_off + wstep * m, X[m])
        k.I("s_waitcnt lgkmcnt(0)")
        k.I("s_barrier")
    P.f(vp, vj, vq, vk, rd, wr2, wr3, kf, jf)
    def sep(kreg):
        a_k, a_n = P.a(), P.a()
        k.I("v_lshlrev_b32 v%d, 3, v%d" % (a_k, kreg))
        k.I("v_sub_u32 v%d, 640, v%d" % (a_n, kreg))
        k.I("v_cmp_eq_u32 vcc, 0, v%d" % kreg)
        k.I("v_cndmask_b32 v%d, v%d, 0, vcc" % (a_n, a_n))
        k.I("v_lshlrev_b32 v%d, 3, v%d" % (a_n, a_n))
        base = None
        for b in range(0, 240, 4):
            if all((b + i) in P.free for i in range(16)):
                base = b; break
        for i in range(16): P.free.remove(base + i)
        zs = []
        for p in range(4):
            zs.append((lds_read_c(k, P, a_k, 5120 * p), lds_read_c(k, P, a_n, 5120 * p)))
        k.I("s_waitcnt lgkmcnt(0)")
        for p, (z, z2) in enumerate(zs):
            o = base + 4 * p
            k.I("v_add_f32 v%d, v%d, v%d" % (o, z.r, z2.r))
            k.I("v_sub_f32 v%d, v%d, v%d" % (o + 1, z.i, z2.i))
            k.I("v_add_f32 v%d, v%d, v%d" % (o + 2, z.i, z2.i))
            k.I("v_sub_f32 v%d, v%d, v%d" % (o + 3, z2.r, z.r))
            F.free(z); F.free(z2)
        k.I("v_lshlrev_b32 v%d, 14, v%d" % (a_k, kreg))
        k.I("s_lshl_b32 s22, s2, 6")
        for p in range(4):
            k.I("buffer_store_dwordx4 v[%d:%d], v%d, s[12:15], s22 offen offset:%d" % (base + 4 * p, base + 4 * p + 3, a_k, 16 * p))
        P.f(a_k, a_n); P.f(*[base + i for i in range(16)])
    sep(0)
    k.I("v_cmp_eq_u32 vcc, 0, v0")
    k.I("s_and_saveexec_b64 s[24:25], vcc")
    k.I("s_cbranch_execz %s_end" % name)
    k3 = P.a()
    k.I("v_mov_b32 v%d, 320" % k3)
    sep(k3)
    k.label("%s_end" % name)
    return k


def gen_k2(name):
    k = Kernel(name)
    k.I("s_cmp_ge_u32 s2, 321")
    k.I("s_cbranch_scc1 %s_end" % name)
    k.I("s_load_dwordx4 s[4:7], s[0:1], 8")
    k.I("s_load_dwordx2 s[16:17], s[0:1], 72")
    k.I("s_waitcnt lgkmcnt(0)")
    add64(k, 16, 17, WS_X1T)
    srd(k, 8, 16, 17, NB_X1T)
    srd(k, 12, 4, 5, 2048 * 642)
    srd(k, 20, 6, 7, 2048 * 642)
    P = Pool(2, 128)
    F = FFT(k, P)
    k.I("s_lshl_b32 s24, s2, 14")
    for q in range(8):
        k.I("s_add_u32 s%d, s24, %d" % (32 + q, 2048 * q))
    k.I("s_lshl_b32 s25, s2, 1")
    for q in range(8):
        k.I("s_add_u32 s%d, s25, %d" % (40 + q, 164352 * q))
    vo, vw = P.a(), P.a()
    k.I("v_lshlrev_b32 v%d, 3, v0" % vo)
    k.I("v_mul_u32_u24 v%d, 642, v0" % vw)
    x = []
    for m in range(8):
        b = P.a2()
        k.I("buffer_load_dwordx2 v[%d:%d], v%d, s[8:11], s%d offen" % (b, b + 1, vo, 32 + m))
        x.append(C(b, b + 1))
    W = []
    for q in range(8):
        a, b = P.a(), P.a()
        k.I("buffer_load_ushort v%d, v%d, s[12:15], s%d offen" % (a, vw, 40 + q))
        k.I("buffer_load_ushort v%d, v%d, s[20:23], s%d offen" % (b, vw, 40 + q))
        W.append((a, b))
    P.f(vw)
    w1, w2, w3, f2, f3, f4, f4b = [P.a() for _ in range(7)]
    t = P.a()
    k.I("v_lshlrev_b32 v%d, 6, v0" % w1)
    k.I("v_and_b32 v%d, 7, v0" % t)
    k.I("v_cvt_f32_u32 v%d, v%d" % (f2, t))
    k.I("v_lshrrev_b32 v%d, 3, v0" % w2)
    k.I("v_lshlrev_b32 v%d, 6, v%d" % (w2, w2))
    k.I("v_add_u32 v%d, v%d, v%d" % (w2, w2, t))
    k.I("v_lshlrev_b32 v%d, 3, v%d" % (w2, w2))
    k.I("v_and_b32 v%d, 63, v0" % t)
    k.I("v_cvt_f32_u32 v%d, v%d" % (f3, t))
    k.I("v_lshrrev_b32 v%d, 6, v0" % w3)
    k.I("v_lshlrev_b32 v%d, 9, v%d" % (w3, w3))
    k.I("v_add_u32 v%d, v%d, v%d" % (w3, w3, t))
    k.I("v_lshlrev_b32 v%d, 3, v%d" % (w3, w3))
    k.I("v_cvt_f32_u32 v%d, v0" % f4)
    k.I("v_add_f32 v%d, 0x43800000, v%d" % (f4b, f4))
    P.f(t)
    k.I("s_waitcnt vmcnt(16)")
    def colfft(x, sign, first_buf):
        bufs = [first_buf, 16384 - first_buf, first_buf]
        X = F.dft(x, sign)
        for m in range(8):
            lds_write_c(k, P, w1, bufs[0] + 8 * m, X[m])
        k.I("s_waitcnt lgkmcnt(0)")
        k.I("s_barrier")
        for (src, dst, tf, den, wb, ws_) in ((bufs[0], bufs[1], f2, 64, w2, 64), (bufs[1], bufs[2], f3, 512, w3, 512)):
            x = [lds_read_c(k, P, vo, src + 2048 * m) for m in range(8)]
            k.I("s_waitcnt lgkmcnt(0)")
            for m in range(1, 8):
                wr, wi = F.twiddle(tf, sign * m / den)
                x[m] = F.twv(x[m], wr, wi)
                P.f(wr, wi)
            X = F.dft(x, sign)
            for m in range(8):
                lds_write_c(k, P, wb, dst + ws_ * m, X[m])
            k.I("s_waitcnt lgkmcnt(0)")
            k.I("s_barrier")
        x = [lds_read_c(k, P, vo, bufs[2] + 2048 * m) for m in range(8)]
        k.I("s_waitcnt lgkmcnt(0)")
        out = [None] * 8
        for h, tf in ((0, f4), (1, f4b)):
            u = [x[2 * m + h] for m in range(4)]
            for m in range(1, 4):
                wr, wi = F.twiddle(tf, sign * m / 2048)
                u[m] = F.twv(u[m], wr, wi)
                P.f(wr, wi)
            U = F.dft(u, sign)
            for m in range(4): out[2 * m + h] = U[m]
        return out
    X = colfft(x, -1, 0)
    k.I("s_waitcnt vmcnt(0)")
    sc = 1.0 / (2.0 * 2048 * 640)
    for q in range(8):
        a, b = W[q]
        k.I("v_lshlrev_b32 v%d, 16, v%d" % (a, a))
        k.I("v_lshlrev_b32 v%d, 16, v%d" % (b, b))
        k.I("v_mul_f32 v%d, %s, v%d" % (a, lit(sc), a))
        k.I("v_mul_f32 v%d, %s, v%d" % (b, lit(sc), b))
        X[q] = F.twv(X[q], a, b)
        P.f(a, b)
    Y = colfft(X, 1, 16384)
    for m in range(8):
        c = to_pair(k, P, Y[m])
        k.I("buffer_store_dwordx2 v[%d:%d], v%d, s[8:11], s%d offen" % (c.r, c.r + 1, vo, 32 + m))
        P.f(c.r, c.i)
    k.label("%s_end" % name)
    return k


def gen_k3(name, res_ws):
    k = Kernel(name)
    k.I("s_cmp_ge_u32 s2, 256")
    k.I("s_cbranch_scc1 %s_end" % name)
    k.I("s_load_dwordx2 s[4:5], s[0:1], %d" % (72 if res_ws else 0))
    k.I("s_load_dwordx2 s[6:7], s[0:1], 72")
    k.I("v_lshrrev_b32 v1, 6, v0")
    k.I("v_readfirstlane_b32 s20, v1")
    k.I("v_and_b32 v2, 63, v0")
    k.I("s_waitcnt lgkmcnt(0)")
    if res_ws: add64(k, 4, 5, WS_X2)
    srd(k, 8, 4, 5, NB_X)
    k.I("s_mov_b32 s28, s6"); k.I("s_mov_b32 s29, s7")
    add64(k, 6, 7, WS_X1T)
    srd(k, 12, 6, 7, NB_X1T)
    k.I("s_mov_b32 s6, s28"); k.I("s_mov_b32 s7, s29")
    add64(k, 6, 7, WS_XRES)
    srd(k, 32, 6, 7, NB_X)
    add64(k, 28, 29, WS_XN)
    srd(k, 36, 28, 29, NB_X)
    P = Pool(4, 128)
    F = FFT(k, P)
    ra = [P.a() for _ in range(10)]; rb = [P.a() for _ in range(10)]
    k.I("v_lshlrev_b32 v3, 1, v2")
    k.I("s_mul_i32 s21, s2, 10240")
    k.I("s_mul_i32 s22, s20, 2560")
    k.I("s_add_u32 s21, s21, s22")
    k.I("s_cmp_ge_u32 s20, 4")
    k.I("s_cbranch_scc1 %s_p0" % name)
    for m in range(10):
        k.I("buffer_load_ushort v%d, v3, s[8:11], s21 offen offset:%d" % (ra[m], 128 * m))
        k.I("buffer_load_ushort v%d, v3, s[8:11], s21 offen offset:%d" % (rb[m], 1280 + 128 * m))
    k.label("%s_p0" % name)
    def unsep(kreg, zero_imag_if_k0):
        a_k, a_n = P.a(), P.a()
        base = None
        for b in range(0, 240, 4):
            if all((b + i) in P.free for i in range(16)):
                base = b; break
        for i in range(16): P.free.remove(base + i)
        k.I("v_lshlrev_b32 v%d, 14, v%d" % (a_k, kreg))
        k.I("s_lshl_b32 s22, s2, 6")
        for p in range(4):
            k.I("buffer_load_dwordx4 v[%d:%d], v%d, s[12:15], s22 offen offset:%d" % (base + 4 * p, base + 4 * p + 3, a_k, 16 * p))
        k.I("v_lshlrev_b32 v%d, 3, v%d" % (a_k, kreg))
        k.I("v_sub_u32 v%d, 640, v%d" % (a_n, kreg))
        k.I("v_cmp_eq_u32 vcc, 0, v%d" % kreg)
        k.I("v_cndmask_b32 v%d, v%d, 0, vcc" % (a_n, a_n))
        k.I("v_lshlrev_b32 v%d, 3, v%d" % (a_n, a_n))
        if not zero_imag_if_k0:
            k.I("v_cmp_eq_u32 vcc, 320, v%d" % kreg)
        k.I("s_waitcnt vmcnt(0)")
        for p in range(4):
            o = base + 4 * p
            k.I("v_cndmask_b32 v%d, v%d, 0, vcc" % (o + 1, o + 1))
            k.I("v_cndmask_b32 v%d, v%d, 0, vcc" % (o + 3, o + 3))
            z = P.a2(); z2 = P.a2()
            k.I("v_sub_f32 v%d, v%d, v%d" % (z, o, o + 3))
            k.I("v_add_f32 v%d, v%d, v%d" % (z + 1, o + 1, o + 2))
            k.I("v_add_f32 v%d, v%d, v%d" % (z2, o, o + 3))
            k.I("v_sub_f32 v%d, v%d, v%d" % (z2 + 1, o + 2, o + 1))
            k.I("ds_write_b64 v%d, v[%d:%d] offset:%d" % (a_k, z, z + 1, 5120 * p))
            k.I("ds_write_b64 v%d, v[%d:%d] offset:%d" % (a_n, z2, z2 + 1, 5120 * p))
            P.f(z, z + 1, z2, z2 + 1)
        P.f(a_k, a_n); P.f(*[base + i for i in range(16)])
    unsep(0, True)
    k.I("v_cmp_eq_u32 vcc, 0, v0")
    k.I("s_and_saveexec_b64 s[24:25], vcc")
    k.I("s_cbranch_execz %s_skip320" % name)
    kk = P.a()
    k.I("v_mov_b32 v%d, 320" % kk)
    unsep(kk, False)
    P.f(kk)
    k.label("%s_skip320" % name)
    k.I("s_mov_b64 exec, s[24:25]")
    vp, vj, vq, vk, rd, w1, w2, kf = [P.a() for _ in range(8)]
    div_magic(k, vp, 0, 205, 14)
    k.I("v_mul_u32_u24 v%d, 80, v%d" % (vj, vp))
    k.I("v_sub_u32 v%d, v0, v%d" % (vj, vj))
    k.I("v_mul_u32_u24 v%d, 5120, v%d" % (vp, vp))
    k.I("v_lshlrev_b32 v%d, 3, v%d" % (rd, vj))
    k.I("v_add_u32 v%d, v%d, v%d" % (rd, rd, vp))
    k.I("v_lshlrev_b32 v%d, 6, v%d" % (w1, vj))
    k.I("v_add_u32 v%d, v%d, v%d" % (w1, w1, vp))
    k.I("v_lshrrev_b32 v%d, 3, v%d" % (vq, vj))
    k.I("v_and_b32 v%d, 7, v%d" % (vk, vj))
    k.I("v_lshlrev_b32 v%d, 6, v%d" % (w2, vq))
    k.I("v_add_u32 v%d, v%d, v%d" % (w2, w2, vk))
    k.I("v_lshlrev_b32 v%d, 3, v%d" % (w2, w2))
    k.I("v_add_u32 v%d, v%d, v%d" % (w2, w2, vp))
    k.I("v_cvt_f32_u32 v%d, v%d" % (kf, vk))
    k.I("s_waitcnt lgkmcnt(0)")
    k.I("s_barrier")
    for (src, dst, tw, wb, wstep) in ((0, 20480, False, w1, 8), (20480, 0, True, w2, 64)):
        x = [lds_read_c(k, P, rd, src + 640 * m) for m in range(8)]
        k.I("s_waitcnt lgkmcnt(0)")
        if tw:
            for m in range(1, 8):
                wr, wi = F.twiddle(kf, m / 64)
                x[m] = F.twv(x[m], wr, wi)
                P.f(wr, wi)
        X = F.dft(x, 1)
        for m in range(8):
            lds_write_c(k, P, wb, dst + wstep * m, X[m])
        k.I("s_waitcnt lgkmcnt(0)")
        k.I("s_barrier")
    P.f(vp, vj, vq, vk, rd, w1, w2, kf)
    k.I("s_cmp_ge_u32 s20, 4")
    k.I("s_cbranch_scc1 %s_end" % name)
    a1, jf = P.a(), P.a()
    k.I("v_lshlrev_b32 v%d, 3, v2" % a1)
    k.I("s_mul_i32 s22, s20, 5120")
    k.I("v_add_u32 v%d, s22, v%d" % (a1, a1))
    k.I("v_cvt_f32_u32 v%d, v2" % jf)
    x = [lds_read_c(k, P, a1, 512 * m) for m in range(10)]
    k.I("s_waitcnt lgkmcnt(0)")
    for m in range(1, 10):
        wr, wi = F.twiddle(jf, m / 640)
        x[m] = F.twv(x[m], wr, wi)
        P.f(wr, wi)
    X = F.dft(x, 1)
    P.f(a1, jf)
    k.I("s_waitcnt vmcnt(0)")
    d = P.a()
    for m in range(10):
        c = F.fix(X[m])
        for (y, r) in ((c.r, ra[m]), (c.i, rb[m])):
            bf16r(k, y, d)
            k.I("v_lshlrev_b32 v%d, 16, v%d" % (r, r))
            k.I("v_add_f32 v%d, v%d, v%d" % (r, r, y))
            bf16r(k, r, d)
        F.free(c)
    for m in range(10):
        for (r, off) in ((ra[m], 128 * m), (rb[m], 1280 + 128 * m)):
            k.I("v_lshrrev_b32 v%d, 16, v%d" % (d, r))
            k.I("buffer_store_short v%d, v3, s[32:35], s21 offen offset:%d" % (d, off))
    layernorm_rows(k, [ra, rb], P)
    for m in range(10):
        for (r, off) in ((ra[m], 128 * m), (rb[m], 1280 + 128 * m)):
            k.I("v_lshrrev_b32 v%d, 16, v%d" % (d, r))
            k.I("buffer_store_short v%d, v3, s[36:39], s21 offen offset:%d" % (d, off))
    k.label("%s_end" % name)
    return k


def gen_gemm(name, mode, out_is_dout=False):
    gu = (mode == 'gu')
    NB = 2 if gu else 1
    K = 640 if gu else 1728
    N = 1728 if gu else 640
    lda = K * 2; ldb = N * 2
    BM, BN, BK = 128, 64, 64
    NTN = N // BN
    NWG = 16 * NTN
    K32 = K // 32
    NIT = K // BK
    STAGE = 16384 + NB * 8192
    k = Kernel(name)
    k.I("s_cmp_ge_u32 s2, %d" % NWG)
    k.I("s_cbranch_scc1 %s_end" % name)
    k.I("s_load_dwordx2 s[6:7], s[0:1], 72")
    if gu:
        k.I("s_load_dwordx4 s[16:19], s[0:1], 32")
    else:
        k.I("s_load_dwordx2 s[16:17], s[0:1], 48")
        k.I("s_load_dwordx2 s[18:19], s[0:1], 56")
    k.I("s_and_b32 s40, s2, 15")
    k.I("s_lshr_b32 s41, s2, 4")
    k.I("v_lshrrev_b32 v1, 6, v0")
    k.I("v_readfirstlane_b32 s20, v1")
    k.I("v_and_b32 v2, 63, v0")
    k.I("s_waitcnt lgkmcnt(0)")
    k.I("s_mov_b32 s4, s6"); k.I("s_mov_b32 s5, s7")
    add64(k, 4, 5, WS_XN if gu else WS_H)
    srd(k, 8, 4, 5, NB_X if gu else NB_H)
    srd(k, 12, 16, 17, K * N * 2)
    if gu:
        srd(k, 24, 18, 19, K * N * 2)
        k.I("s_mov_b32 s4, s6"); k.I("s_mov_b32 s5, s7")
        add64(k, 4, 5, WS_H)
        srd(k, 28, 4, 5, NB_H)
    else:
        if out_is_dout:
            srd(k, 28, 18, 19, NB_X)
        else:
            k.I("s_mov_b32 s4, s6"); k.I("s_mov_b32 s5, s7")
            add64(k, 4, 5, WS_X2)
            srd(k, 28, 4, 5, NB_X)
        k.I("s_mov_b32 s4, s6"); k.I("s_mov_b32 s5, s7")
        add64(k, 4, 5, WS_XRES)
        srd(k, 24, 4, 5, NB_X)
    k.I("v_lshrrev_b32 v3, 3, v2")
    k.I("v_lshrrev_b32 v4, 4, v2")
    k.I("v_and_b32 v5, 7, v2")
    k.I("s_lshl_b32 s21, s20, 5")
    k.I("s_lshl_b32 s22, s40, 7")
    k.I("s_add_u32 s21, s21, s22")
    XO = [10, 11, 12, 13]
    for i in range(4):
        k.I("v_add_u32 v6, %d, v4" % (4 * i))
        k.I("v_and_b32 v6, 7, v6")
        k.I("v_xor_b32 v6, v6, v5")
        k.I("v_lshlrev_b32 v6, 4, v6")
        k.I("v_add_u32 v7, %d, v3" % (8 * i))
        k.I("v_add_u32 v7, s21, v7")
        k.I("v_mul_u32_u24 v7, %d, v7" % lda)
        k.I("v_add_u32 v%d, v6, v7" % XO[i])
    WO = [14, 15]
    k.I("s_lshl_b32 s21, s20, 4")
    k.I("s_mul_i32 s22, s41, %d" % (BN * 2))
    for i in range(2):
        k.I("v_add_u32 v7, %d, v3" % (8 * i))
        k.I("v_add_u32 v7, s21, v7")
        k.I("v_lshrrev_b32 v6, 1, v7")
        k.I("v_and_b32 v6, 1, v6")
        k.I("v_lshrrev_b32 v8, 3, v7")
        k.I("v_and_b32 v8, 1, v8")
        k.I("v_lshlrev_b32 v8, 1, v8")
        k.I("v_or_b32 v6, v6, v8")
        k.I("v_lshlrev_b32 v6, 1, v6")
        k.I("v_xor_b32 v6, v6, v5")
        k.I("v_lshlrev_b32 v6, 4, v6")
        k.I("v_mul_u32_u24 v7, %d, v7" % ldb)
        k.I("v_add_u32 v7, v7, v6")
        k.I("v_add_u32 v%d, s22, v7" % WO[i])
    XA = [16, 17]
    k.I("v_and_b32 v3, 15, v2")
    k.I("v_lshrrev_b32 v4, 4, v2")
    k.I("s_lshr_b32 s21, s20, 1")
    k.I("s_lshl_b32 s21, s21, 13")
    for h in range(2):
        k.I("v_add_u32 v6, %d, v4" % (4 * h))
        k.I("v_lshrrev_b32 v7, 1, v3")
        k.I("v_xor_b32 v6, v6, v7")
        k.I("v_lshlrev_b32 v6, 4, v6")
        k.I("v_lshlrev_b32 v7, 7, v3")
        k.I("v_add_u32 v6, v6, v7")
        k.I("v_add_u32 v%d, s21, v6" % XA[h])
    WA = [18, 19]
    k.I("s_and_b32 s21, s20, 1")
    k.I("v_lshrrev_b32 v5, 3, v3")
    k.I("v_and_b32 v6, 1, v4")
    k.I("v_lshlrev_b32 v6, 1, v6")
    k.I("v_or_b32 v5, v5, v6")
    k.I("v_lshlrev_b32 v5, 1, v5")
    k.I("v_and_b32 v6, 3, v3")
    k.I("v_lshrrev_b32 v6, 1, v6")
    k.I("s_lshl_b32 s22, s21, 2")
    k.I("v_add_u32 v6, s22, v6")
    k.I("v_lshlrev_b32 v7, 3, v4")
    k.I("v_lshrrev_b32 v8, 2, v3")
    k.I("v_add_u32 v7, v7, v8")
    k.I("v_lshlrev_b32 v7, 7, v7")
    k.I("v_and_b32 v8, 1, v3")
    k.I("v_lshlrev_b32 v8, 3, v8")
    k.I("v_add_u32 v7, v7, v8")
    k.I("v_add_u32 v7, 16384, v7")
    for nt in range(2):
        k.I("v_add_u32 v8, %d, v6" % (2 * nt))
        k.I("v_xor_b32 v8, v8, v5")
        k.I("v_lshlrev_b32 v8, 4, v8")
        k.I("v_add_u32 v%d, v8, v7" % WA[nt])
    ACC = 64
    def acc(b, nt, mt): return ACC + ((b * 2 + nt) * 4 + mt) * 4
    for r in range(ACC, ACC + NB * 32):
        k.I("v_mov_b32 v%d, 0" % r)
    XF = [32, 48]
    WF = [20, 40 + 88]
    WFb = [ACC + NB * 32, ACC + NB * 32 + 16]
    k.I("s_lshl_b32 s42, s20, 12")
    k.I("s_lshl_b32 s43, s20, 11")
    def dma(stage, ksoff_x, ksoff_w):
        base = stage * STAGE
        for i in range(4):
            k.I("s_add_u32 m0, s42, %d" % (base + 1024 * i))
            k.I("s_nop 0")
            k.I("buffer_load_dwordx4 v%d, s[8:11], s%d offen lds" % (XO[i], ksoff_x))
        for b in range(NB):
            for i in range(2):
                k.I("s_add_u32 m0, s43, %d" % (base + 16384 + 8192 * b + 1024 * i))
                k.I("s_nop 0")
                k.I("buffer_load_dwordx4 v%d, s[%d:%d], s%d offen lds" % (WO[i], 12 if b == 0 else 24, 15 if b == 0 else 27, ksoff_w))
    k.I("s_mov_b32 s44, 0"); k.I("s_mov_b32 s45, 0")
    dma(0, 44, 45)
    k.I("s_mov_b32 s46, 0")
    k.label("%s_loop" % name)
    for stage in range(2):
        k.I("s_waitcnt vmcnt(0)")
        k.I("s_barrier")
        k.I("s_add_u32 s46, s46, 1")
        k.I("s_add_u32 s44, s44, %d" % (BK * 2))
        k.I("s_add_u32 s45, s45, %d" % (BK * ldb))
        k.I("s_cmp_ge_u32 s46, %d" % NIT)
        k.I("s_cbranch_scc1 %s_nodma%d" % (name, stage))
        dma(1 - stage, 44, 45)
        k.label("%s_nodma%d" % (name, stage))
        base = stage * STAGE
        for h in range(2):
            for mt in range(4):
                r = XF[h] + 4 * mt
                k.I("ds_read_b128 v[%d:%d], v%d offset:%d" % (r, r + 3, XA[h], base + 2048 * mt))
            for b in range(NB):
                for nt in range(2):
                    r = WFb[h] + (b * 2 + nt) * 4
                    for sub in range(2):
                        k.I("ds_read_b64_tr_b16 v[%d:%d], v%d offset:%d" % (r + 2 * sub, r + 2 * sub + 1, WA[nt], base + 8192 * b + 4096 * h + 512 * sub))
        for h in range(2):
            k.I("s_waitcnt lgkmcnt(%d)" % (0 if h == 1 else (4 + NB * 4)))
            for b in range(NB):
                for nt in range(2):
                    for mt in range(4):
                        a = acc(b, nt, mt); wf = WFb[h] + (b * 2 + nt) * 4; xf = XF[h] + 4 * mt
                        k.I("v_mfma_f32_16x16x32_bf16 v[%d:%d], v[%d:%d], v[%d:%d], v[%d:%d]" % (a, a + 3, wf, wf + 3, xf, xf + 3, a, a + 3))
        if stage == 0:
            k.I("s_cmp_ge_u32 s46, %d" % NIT)
            k.I("s_cbranch_scc1 %s_done" % name)
    k.I("s_cmp_lt_u32 s46, %d" % NIT)
    k.I("s_cbranch_scc1 %s_loop" % name)
    k.label("%s_done" % name)
    k.nop(10)
    ldo = N * 2
    k.I("s_lshr_b32 s21, s20, 1")
    k.I("s_lshl_b32 s21, s21, 6")
    k.I("s_lshl_b32 s22, s40, 7")
    k.I("s_add_u32 s21, s21, s22")
    k.I("v_add_u32 v5, s21, v3")
    k.I("v_mul_u32_u24 v5, %d, v5" % ldo)
    k.I("s_and_b32 s21, s20, 1")
    k.I("s_lshl_b32 s21, s21, 6")
    k.I("s_mul_i32 s22, s41, %d" % (BN * 2))
    k.I("s_add_u32 s21, s21, s22")
    k.I("v_lshlrev_b32 v6, 3, v4")
    k.I("v_add_u32 v5, v5, v6")
    k.I("v_add_u32 v5, s21, v5")
    if not gu:
        for nt in range(2):
            for mt in range(4):
                k.I("v_add_u32 v6, %d, v5" % (16 * mt * ldo + 32 * nt))
                k.I("buffer_load_dwordx2 v[%d:%d], v6, s[24:27], 0 offen" % (20 + (nt * 4 + mt) * 2, 21 + (nt * 4 + mt) * 2))
        k.I("s_waitcnt vmcnt(0)")
    for nt in range(2):
        for mt in range(4):
            a = acc(0, nt, mt)
            if gu:
                u = acc(1, nt, mt)
                for j in range(4):
                    bf16r(k, a + j, 7); bf16r(k, u + j, 7)
                    k.I("v_mul_f32 v8, 0xbfb8aa3b, v%d" % (a + j))
                    k.I("v_exp_f32 v8, v8")
                    k.I("v_add_f32 v8, 1.0, v8")
                    k.I("v_rcp_f32 v8, v8")
                    k.I("v_mul_f32 v%d, v%d, v8" % (a + j, a + j))
                    bf16r(k, a + j, 7)
                    k.I("v_mul_f32 v%d, v%d, v%d" % (a + j, a + j, u + j))
            else:
                rr = 20 + (nt * 4 + mt) * 2
                for j in range(4):
                    bf16r(k, a + j, 7)
                    if j % 2 == 0: k.I("v_lshlrev_b32 v8, 16, v%d" % (rr + j // 2))
                    else: k.I("v_and_b32 v8, 0xffff0000, v%d" % (rr + j // 2))
                    k.I("v_add_f32 v%d, v%d, v8" % (a + j, a + j))
            k.I("v_cvt_pk_bf16_f32 v%d, v%d, v%d" % (a, a, a + 1))
            k.I("v_cvt_pk_bf16_f32 v%d, v%d, v%d" % (a + 1, a + 2, a + 3))
            k.I("v_add_u32 v6, %d, v5" % (16 * mt * ldo + 32 * nt))
            k.I("buffer_store_dwordx2 v[%d:%d], v6, s[28:31], 0 offen" % (a, a + 1))
    k.label("%s_end" % name)
    return k, NWG, 2 * STAGE

def assemble(kernels_launch):
    hdr = open('interleave_layers__spectral_gfnet__glu_gated_swiglu__prompt.s.ref').read().split('\n')
    head = [l for l in hdr[:11]]
    out = head[:]
    for (k, grid, block, lds) in kernels_launch:
        out.append("; @launch kernel=%s grid=(%d,1,1) block=(%d,1,1) lds=%d" % (k.name, grid, block, lds))
    out.append('.amdgcn_target "amdgcn-amd-amdhsa--gfx950"')
    out.append(".text")
    descs = []
    seen = set()
    for (k, grid, block, lds) in kernels_launch:
        if k.name in seen: continue
        seen.add(k.name)
        t, d = k.text()
        out.append(t); descs.append(d)
    out.append('.section .rodata,"a"')
    for d in descs:
        out.append(".p2align 6"); out.append(d)
    return "\n".join(out) + "\n"

def full_list():
    L = []
    for lay in (0, 1):
        sfx = "ab"[lay]
        L.append((gen_k1("k1%s_kernel" % sfx, lay == 1), 256, 320, 40960))
        L.append((gen_k2("k2%s_kernel" % sfx), 321, 256, 32768))
        L.append((gen_k3("k3%s_kernel" % sfx, lay == 1), 256, 320, 40960))
        g4, n4, l4 = gen_gemm("k4%s_kernel" % sfx, "gu"); L.append((g4, n4, 256, l4))
        g5, n5, l5 = gen_gemm("k5%s_kernel" % sfx, "dn", out_is_dout=(lay == 1)); L.append((g5, n5, 256, l5))
    return L

if __name__ == "__main__":
    open(sys.argv[1] if len(sys.argv) > 1 else 't.s', 'w').write(assemble(full_list()))
```

```python
import sys, math
sys.path.insert(0, 'work')
from asmgen import Kernel, lit
from fftgen import Pool, C, FFT

WS_X1T = 0
WS_XRES = 8 << 20
WS_XN = 12 << 20
WS_H = 16 << 20
WS_X2 = 24 << 20
NB_X = 2048 * 640 * 2
NB_X1T = 321 * 2048 * 8
NB_H = 2048 * 1728 * 2

def srd(k, d, lo, hi, nbytes):
    k.I("s_mov_b32 s%d, s%d" % (d, lo))
    k.I("s_and_b32 s%d, s%d, 0xffff" % (d + 1, hi))
    k.I("s_mov_b32 s%d, 0x%x" % (d + 2, nbytes))
    k.I("s_mov_b32 s%d, 0x00020000" % (d + 3))

def add64(k, lo, hi, imm):
    if imm:
        k.I("s_add_u32 s%d, s%d, 0x%x" % (lo, lo, imm))
        k.I("s_addc_u32 s%d, s%d, 0" % (hi, hi))

def wave_allreduce(k, regs, tmp):
    for pat in ("quad_perm:[1,0,3,2]", "quad_perm:[2,3,0,1]", "row_ror:4", "row_ror:8"):
        for r in regs:
            k.I("v_add_f32_dpp v%d, v%d, v%d %s row_mask:0xf bank_mask:0xf" % (r, r, r, pat))
    for op in ("v_permlane16_swap_b32", "v_permlane32_swap_b32"):
        for r, t in zip(regs, tmp):
            k.I("v_mov_b32 v%d, v%d" % (t, r))
        for r, t in zip(regs, tmp):
            k.I("%s v%d, v%d" % (op, t, r))
        for r, t in zip(regs, tmp):
            k.I("v_add_f32 v%d, v%d, v%d" % (r, r, t))

def bf16r(k, r, t):
    k.I("v_cvt_pk_bf16_f32 v%d, v%d, v%d" % (t, r, r))
    k.I("v_lshlrev_b32 v%d, 16, v%d" % (r, t))

def layernorm_rows(k, rows, P):
    n = len(rows)
    s = [P.a() for _ in range(n)]; t = [P.a() for _ in range(n)]
    for i, R in enumerate(rows):
        k.I("v_add_f32 v%d, v%d, v%d" % (s[i], R[0], R[1]))
        for r in R[2:]:
            k.I("v_add_f32 v%d, v%d, v%d" % (s[i], s[i], r))
    wave_allreduce(k, s, t)
    q = [P.a() for _ in range(n)]
    d = P.a()
    for i, R in enumerate(rows):
        k.I("v_mul_f32 v%d, %s, v%d" % (s[i], lit(1.0 / 640), s[i]))
        for j, r in enumerate(R):
            k.I("v_sub_f32 v%d, v%d, v%d" % (d, r, s[i]))
            if j == 0: k.I("v_mul_f32 v%d, v%d, v%d" % (q[i], d, d))
            else: k.I("v_fmac_f32 v%d, v%d, v%d" % (q[i], d, d))
    wave_allreduce(k, q, t)
    for i, R in enumerate(rows):
        k.I("v_mul_f32 v%d, %s, v%d" % (q[i], lit(1.0 / 640), q[i]))
        bf16r(k, q[i], d)
        k.I("v_add_f32 v%d, %s, v%d" % (q[i], lit(1e-5), q[i]))
        bf16r(k, q[i], d)
        k.I("v_sqrt_f32 v%d, v%d" % (q[i], q[i]))
        bf16r(k, q[i], d)
        k.I("v_rcp_f32 v%d, v%d" % (q[i], q[i]))
        bf16r(k, s[i], d)
        for r in R:
            k.I("v_sub_f32 v%d, v%d, v%d" % (r, r, s[i]))
            bf16r(k, r, d)
            k.I("v_mul_f32 v%d, v%d, v%d" % (r, r, q[i]))
            bf16r(k, r, d)
    P.f(*s); P.f(*t); P.f(*q); P.f(d)

def to_pair(k, P, c):
    if c.r % 2 == 0 and c.i == c.r + 1 and c.sr > 0 and c.si > 0:
        return c
    b = P.a2()
    k.I(("v_mov_b32 v%d, v%d" if c.sr > 0 else "v_sub_f32 v%d, 0, v%d") % (b, c.r))
    k.I(("v_mov_b32 v%d, v%d" if c.si > 0 else "v_sub_f32 v%d, 0, v%d") % (b + 1, c.i))
    P.f(c.r, c.i)
    return C(b, b + 1)

def lds_read_c(k, P, addr, off):
    b = P.a2()
    k.I("ds_read_b64 v[%d:%d], v%d offset:%d" % (b, b + 1, addr, off))
    return C(b, b + 1)

def lds_write_c(k, P, addr, off, c):
    c = to_pair(k, P, c)
    k.I("ds_write_b64 v%d, v[%d:%d] offset:%d" % (addr, c.r, c.r + 1, off))
    P.f(c.r, c.i)

def div_magic(k, dst, src, mul, sh):
    k.I("v_mul_u32_u24 v%d, %d, v%d" % (dst, mul, src))
    k.I("v_lshrrev_b32 v%d, %d, v%d" % (dst, sh, dst))

def gen_k1(name, src_ws):
    k = Kernel(name)
    k.I("s_cmp_ge_u32 s2, 256")
    k.I("s_cbranch_scc1 %s_end" % name)
    k.I("s_load_dwordx2 s[4:5], s[0:1], %d" % (72 if src_ws else 0))
    k.I("s_load_dwordx2 s[6:7], s[0:1], 72")
    k.I("v_lshrrev_b32 v1, 6, v0")
    k.I("v_readfirstlane_b32 s20, v1")
    k.I("v_and_b32 v2, 63, v0")
    k.I("s_waitcnt lgkmcnt(0)")
    if src_ws: add64(k, 4, 5, WS_X2)
    srd(k, 8, 4, 5, NB_X)
    add64(k, 6, 7, WS_X1T)
    srd(k, 12, 6, 7, NB_X1T)
    P = Pool(4, 120)
    F = FFT(k, P)
    k.I("s_cmp_ge_u32 s20, 4")
    k.I("s_cbranch_scc1 %s_p2" % name)
    k.I("s_mul_i32 s21, s2, 10240")
    k.I("s_mul_i32 s22, s20, 2560")
    k.I("s_add_u32 s21, s21, s22")
    k.I("v_lshlrev_b32 v3, 1, v2")
    ra = [P.a() for _ in range(10)]; rb = [P.a() for _ in range(10)]
    for m in range(10):
        k.I("buffer_load_ushort v%d, v3, s[8:11], s21 offen offset:%d" % (ra[m], 128 * m))
        k.I("buffer_load_ushort v%d, v3, s[8:11], s21 offen offset:%d" % (rb[m], 1280 + 128 * m))
    k.I("s_waitcnt vmcnt(0)")
    for r in ra + rb:
        k.I("v_lshlrev_b32 v%d, 16, v%d" % (r, r))
    layernorm_rows(k, [ra, rb], P)
    x = [C(ra[m], rb[m]) for m in range(10)]
    X = F.dft(x, -1)
    a1 = P.a()
    k.I("v_mul_u32_u24 v%d, 80, v2" % a1)
    k.I("s_mul_i32 s22, s20, 5120")
    k.I("v_add_u32 v%d, s22, v%d" % (a1, a1))
    for m in range(10):
        lds_write_c(k, P, a1, 8 * m, X[m])
    P.f(a1)
    k.label("%s_p2" % name)
    vp, vj, vq, vk, rd, wr2, wr3, kf, jf = [P.a() for _ in range(9)]
    div_magic(k, vp, 0, 205, 14)
    k.I("v_mul_u32_u24 v%d, 80, v%d" % (vj, vp))
    k.I("v_sub_u32 v%d, v0, v%d" % (vj, vj))
    div_magic(k, vq, vj, 205, 11)
    k.I("v_mul_u32_u24 v%d, 10, v%d" % (vk, vq))
    k.I("v_sub_u32 v%d, v%d, v%d" % (vk, vj, vk))
    k.I("v_mul_u32_u24 v%d, 5120, v%d" % (vp, vp))
    k.I("v_lshlrev_b32 v%d, 3, v%d" % (rd, vj))
    k.I("v_add_u32 v%d, v%d, v%d" % (rd, rd, vp))
    k.I("v_mul_u32_u24 v%d, 80, v%d" % (wr2, vq))
    k.I("v_add_u32 v%d, v%d, v%d" % (wr2, wr2, vk))
    k.I("v_lshlrev_b32 v%d, 3, v%d" % (wr2, wr2))
    k.I("v_add_u32 v%d, v%d, v%d" % (wr2, wr2, vp))
    k.I("v_cvt_f32_u32 v%d, v%d" % (kf, vk))
    k.I("v_cvt_f32_u32 v%d, v%d" % (jf, vj))
    k.I("s_waitcnt lgkmcnt(0)")
    k.I("s_barrier")
    for (ph, src_off, dst_off, tf, den, wbase, wstep) in ((2, 0, 20480, kf, 80, wr2, 80), (3, 20480, 0, jf, 640, rd, 640)):
        x = [lds_read_c(k, P, rd, src_off + 640 * m) for m in range(8)]
        k.I("s_waitcnt lgkmcnt(0)")
        for m in range(1, 8):
            wr, wi = F.twiddle(tf, -m / den)
            x[m] = F.twv(x[m], wr, wi)
            P.f(wr, wi)
        X = F.dft(x, -1)
        for m in range(8):
            lds_write_c(k, P, wbase, dst_off + wstep * m, X[m])
        k.I("s_waitcnt lgkmcnt(0)")
        k.I("s_barrier")
    P.f(vp, vj, vq, vk, rd, wr2, wr3, kf, jf)
    def sep(kreg):
        a_k, a_n = P.a(), P.a()
        k.I("v_lshlrev_b32 v%d, 3, v%d" % (a_k, kreg))
        k.I("v_sub_u32 v%d, 640, v%d" % (a_n, kreg))
        k.I("v_cmp_eq_u32 vcc, 0, v%d" % kreg)
        k.I("v_cndmask_b32 v%d, v%d, 0, vcc" % (a_n, a_n))
        k.I("v_lshlrev_b32 v%d, 3, v%d" % (a_n, a_n))
        base = None
        for b in range(0, 240, 4):
            if all((b + i) in P.free for i in range(16)):
                base = b; break
        for i in range(16): P.free.remove(base + i)
        zs = []
        for p in range(4):
            zs.append((lds_read_c(k, P, a_k, 5120 * p), lds_read_c(k, P, a_n, 5120 * p)))
        k.I("s_waitcnt lgkmcnt(0)")
        for p, (z, z2) in enumerate(zs):
            o = base + 4 * p
            k.I("v_add_f32 v%d, v%d, v%d" % (o, z.r, z2.r))
            k.I("v_sub_f32 v%d, v%d, v%d" % (o + 1, z.i, z2.i))
            k.I("v_add_f32 v%d, v%d, v%d" % (o + 2, z.i, z2.i))
            k.I("v_sub_f32 v%d, v%d, v%d" % (o + 3, z2.r, z.r))
            F.free(z); F.free(z2)
        k.I("v_lshlrev_b32 v%d, 14, v%d" % (a_k, kreg))
        k.I("s_lshl_b32 s22, s2, 6")
        for p in range(4):
            k.I("buffer_store_dwordx4 v[%d:%d], v%d, s[12:15], s22 offen offset:%d" % (base + 4 * p, base + 4 * p + 3, a_k, 16 * p))
        P.f(a_k, a_n); P.f(*[base + i for i in range(16)])
    sep(0)
    k.I("v_cmp_eq_u32 vcc, 0, v0")
    k.I("s_and_saveexec_b64 s[24:25], vcc")
    k.I("s_cbranch_execz %s_end" % name)
    k3 = P.a()
    k.I("v_mov_b32 v%d, 320" % k3)
    sep(k3)
    k.label("%s_end" % name)
    return k


def gen_k2(name):
    k = Kernel(name)
    k.I("s_cmp_ge_u32 s2, 321")
    k.I("s_cbranch_scc1 %s_end" % name)
    k.I("s_load_dwordx4 s[4:7], s[0:1], 8")
    k.I("s_load_dwordx2 s[16:17], s[0:1], 72")
    k.I("s_waitcnt lgkmcnt(0)")
    add64(k, 16, 17, WS_X1T)
    srd(k, 8, 16, 17, NB_X1T)
    srd(k, 12, 4, 5, 2048 * 642)
    srd(k, 20, 6, 7, 2048 * 642)
    P = Pool(2, 128)
    F = FFT(k, P)
    k.I("s_lshl_b32 s24, s2, 14")
    for q in range(8):
        k.I("s_add_u32 s%d, s24, %d" % (32 + q, 2048 * q))
    k.I("s_lshl_b32 s25, s2, 1")
    for q in range(8):
        k.I("s_add_u32 s%d, s25, %d" % (40 + q, 164352 * q))
    vo, vw = P.a(), P.a()
    k.I("v_lshlrev_b32 v%d, 3, v0" % vo)
    k.I("v_mul_u32_u24 v%d, 642, v0" % vw)
    x = []
    for m in range(8):
        b = P.a2()
        k.I("buffer_load_dwordx2 v[%d:%d], v%d, s[8:11], s%d offen" % (b, b + 1, vo, 32 + m))
        x.append(C(b, b + 1))
    W = []
    for q in range(8):
        a, b = P.a(), P.a()
        k.I("buffer_load_ushort v%d, v%d, s[12:15], s%d offen" % (a, vw, 40 + q))
        k.I("buffer_load_ushort v%d, v%d, s[20:23], s%d offen" % (b, vw, 40 + q))
        W.append((a, b))
    P.f(vw)
    w1, w2, w3, f2, f3, f4, f4b = [P.a() for _ in range(7)]
    t = P.a()
    k.I("v_lshlrev_b32 v%d, 6, v0" % w1)
    k.I("v_and_b32 v%d, 7, v0" % t)
    k.I("v_cvt_f32_u32 v%d, v%d" % (f2, t))
    k.I("v_lshrrev_b32 v%d, 3, v0" % w2)
    k.I("v_lshlrev_b32 v%d, 6, v%d" % (w2, w2))
    k.I("v_add_u32 v%d, v%d, v%d" % (w2, w2, t))
    k.I("v_lshlrev_b32 v%d, 3, v%d" % (w2, w2))
    k.I("v_and_b32 v%d, 63, v0" % t)
    k.I("v_cvt_f32_u32 v%d, v%d" % (f3, t))
    k.I("v_lshrrev_b32 v%d, 6, v0" % w3)
    k.I("v_lshlrev_b32 v%d, 9, v%d" % (w3, w3))
    k.I("v_add_u32 v%d, v%d, v%d" % (w3, w3, t))
    k.I("v_lshlrev_b32 v%d, 3, v%d" % (w3, w3))
    k.I("v_cvt_f32_u32 v%d, v0" % f4)
    k.I("v_add_f32 v%d, 0x43800000, v%d" % (f4b, f4))
    P.f(t)
    k.I("s_waitcnt vmcnt(16)")
    def colfft(x, sign, first_buf):
        bufs = [first_buf, 16384 - first_buf, first_buf]
        X = F.dft(x, sign)
        for m in range(8):
            lds_write_c(k, P, w1, bufs[0] + 8 * m, X[m])
        k.I("s_waitcnt lgkmcnt(0)")
        k.I("s_barrier")
        for (src, dst, tf, den, wb, ws_) in ((bufs[0], bufs[1], f2, 64, w2, 64), (bufs[1], bufs[2], f3, 512, w3, 512)):
            x = [lds_read_c(k, P, vo, src + 2048 * m) for m in range(8)]
            k.I("s_waitcnt lgkmcnt(0)")
            for m in range(1, 8):
                wr, wi = F.twiddle(tf, sign * m / den)
                x[m] = F.twv(x[m], wr, wi)
                P.f(wr, wi)
            X = F.dft(x, sign)
            for m in range(8):
                lds_write_c(k, P, wb, dst + ws_ * m, X[m])
            k.I("s_waitcnt lgkmcnt(0)")
            k.I("s_barrier")
        x = [lds_read_c(k, P, vo, bufs[2] + 2048 * m) for m in range(8)]
        k.I("s_waitcnt lgkmcnt(0)")
        out = [None] * 8
        for h, tf in ((0, f4), (1, f4b)):
            u = [x[2 * m + h] for m in range(4)]
            for m in range(1, 4):
                wr, wi = F.twiddle(tf, sign * m / 2048)
                u[m] = F.twv(u[m], wr, wi)
                P.f(wr, wi)
            U = F.dft(u, sign)
            for m in range(4): out[2 * m + h] = U[m]
        return out
    X = colfft(x, -1, 0)
    k.I("s_waitcnt vmcnt(0)")
    sc = 1.0 / (2.0 * 2048 * 640)
    for q in range(8):
        a, b = W[q]
        k.I("v_lshlrev_b32 v%d, 16, v%d" % (a, a))
        k.I("v_lshlrev_b32 v%d, 16, v%d" % (b, b))
        k.I("v_mul_f32 v%d, %s, v%d" % (a, lit(sc), a))
        k.I("v_mul_f32 v%d, %s, v%d" % (b, lit(sc), b))
        X[q] = F.twv(X[q], a, b)
        P.f(a, b)
    Y = colfft(X, 1, 16384)
    for m in range(8):
        c = to_pair(k, P, Y[m])
        k.I("buffer_store_dwordx2 v[%d:%d], v%d, s[8:11], s%d offen" % (c.r, c.r + 1, vo, 32 + m))
        P.f(c.r, c.i)
    k.label("%s_end" % name)
    return k


def gen_k3(name, res_ws):
    k = Kernel(name)
    k.I("s_cmp_ge_u32 s2, 256")
    k.I("s_cbranch_scc1 %s_end" % name)
    k.I("s_load_dwordx2 s[4:5], s[0:1], %d" % (72 if res_ws else 0))
    k.I("s_load_dwordx2 s[6:7], s[0:1], 72")
    k.I("v_lshrrev_b32 v1, 6, v0")
    k.I("v_readfirstlane_b32 s20, v1")
    k.I("v_and_b32 v2, 63, v0")
    k.I("s_waitcnt lgkmcnt(0)")
    if res_ws: add64(k, 4, 5, WS_X2)
    srd(k, 8, 4, 5, NB_X)
    k.I("s_mov_b32 s28, s6"); k.I("s_mov_b32 s29, s7")
    add64(k, 6, 7, WS_X1T)
    srd(k, 12, 6, 7, NB_X1T)
    k.I("s_mov_b32 s6, s28"); k.I("s_mov_b32 s7, s29")
    add64(k, 6, 7, WS_XRES)
    srd(k, 32, 6, 7, NB_X)
    add64(k, 28, 29, WS_XN)
    srd(k, 36, 28, 29, NB_X)
    P = Pool(4, 128)
    F = FFT(k, P)
    ra = [P.a() for _ in range(10)]; rb = [P.a() for _ in range(10)]
    k.I("v_lshlrev_b32 v3, 1, v2")
    k.I("s_mul_i32 s21, s2, 10240")
    k.I("s_mul_i32 s22, s20, 2560")
    k.I("s_add_u32 s21, s21, s22")
    k.I("s_cmp_ge_u32 s20, 4")
    k.I("s_cbranch_scc1 %s_p0" % name)
    for m in range(10):
        k.I("buffer_load_ushort v%d, v3, s[8:11], s21 offen offset:%d" % (ra[m], 128 * m))
        k.I("buffer_load_ushort v%d, v3, s[8:11], s21 offen offset:%d" % (rb[m], 1280 + 128 * m))
    k.label("%s_p0" % name)
    def unsep(kreg, zero_imag_if_k0):
        a_k, a_n = P.a(), P.a()
        base = None
        for b in range(0, 240, 4):
            if all((b + i) in P.free for i in range(16)):
                base = b; break
        for i in range(16): P.free.remove(base + i)
        k.I("v_lshlrev_b32 v%d, 14, v%d" % (a_k, kreg))
        k.I("s_lshl_b32 s22, s2, 6")
        for p in range(4):
            k.I("buffer_load_dwordx4 v[%d:%d], v%d, s[12:15], s22 offen offset:%d" % (base + 4 * p, base + 4 * p + 3, a_k, 16 * p))
        k.I("v_lshlrev_b32 v%d, 3, v%d" % (a_k, kreg))
        k.I("v_sub_u32 v%d, 640, v%d" % (a_n, kreg))
        k.I("v_cmp_eq_u32 vcc, 0, v%d" % kreg)
        k.I("v_cndmask_b32 v%d, v%d, 0, vcc" % (a_n, a_n))
        k.I("v_lshlrev_b32 v%d, 3, v%d" % (a_n, a_n))
        if not zero_imag_if_k0:
            k.I("v_cmp_eq_u32 vcc, 320, v%d" % kreg)
        k.I("s_waitcnt vmcnt(0)")
        for p in range(4):
            o = base + 4 * p
            k.I("v_cndmask_b32 v%d, v%d, 0, vcc" % (o + 1, o + 1))
            k.I("v_cndmask_b32 v%d, v%d, 0, vcc" % (o + 3, o + 3))
            z = P.a2(); z2 = P.a2()
            k.I("v_sub_f32 v%d, v%d, v%d" % (z, o, o + 3))
            k.I("v_add_f32 v%d, v%d, v%d" % (z + 1, o + 1, o + 2))
            k.I("v_add_f32 v%d, v%d, v%d" % (z2, o, o + 3))
            k.I("v_sub_f32 v%d, v%d, v%d" % (z2 + 1, o + 2, o + 1))
            k.I("ds_write_b64 v%d, v[%d:%d] offset:%d" % (a_k, z, z + 1, 5120 * p))
            k.I("ds_write_b64 v%d, v[%d:%d] offset:%d" % (a_n, z2, z2 + 1, 5120 * p))
            P.f(z, z + 1, z2, z2 + 1)
        P.f(a_k, a_n); P.f(*[base + i for i in range(16)])
    unsep(0, True)
    k.I("v_cmp_eq_u32 vcc, 0, v0")
    k.I("s_and_saveexec_b64 s[24:25], vcc")
    k.I("s_cbranch_execz %s_skip320" % name)
    kk = P.a()
    k.I("v_mov_b32 v%d, 320" % kk)
    unsep(kk, False)
    P.f(kk)
    k.label("%s_skip320" % name)
    k.I("s_mov_b64 exec, s[24:25]")
    vp, vj, vq, vk, rd, w1, w2, kf = [P.a() for _ in range(8)]
    div_magic(k, vp, 0, 205, 14)
    k.I("v_mul_u32_u24 v%d, 80, v%d" % (vj, vp))
    k.I("v_sub_u32 v%d, v0, v%d" % (vj, vj))
    k.I("v_mul_u32_u24 v%d, 5120, v%d" % (vp, vp))
    k.I("v_lshlrev_b32 v%d, 3, v%d" % (rd, vj))
    k.I("v_add_u32 v%d, v%d, v%d" % (rd, rd, vp))
    k.I("v_lshlrev_b32 v%d, 6, v%d" % (w1, vj))
    k.I("v_add_u32 v%d, v%d, v%d" % (w1, w1, vp))
    k.I("v_lshrrev_b32 v%d, 3, v%d" % (vq, vj))
    k.I("v_and_b32 v%d, 7, v%d" % (vk, vj))
    k.I("v_lshlrev_b32 v%d, 6, v%d" % (w2, vq))
    k.I("v_add_u32 v%d, v%d, v%d" % (w2, w2, vk))
    k.I("v_lshlrev_b32 v%d, 3, v%d" % (w2, w2))
    k.I("v_add_u32 v%d, v%d, v%d" % (w2, w2, vp))
    k.I("v_cvt_f32_u32 v%d, v%d" % (kf, vk))
    k.I("s_waitcnt lgkmcnt(0)")
    k.I("s_barrier")
    for (src, dst, tw, wb, wstep) in ((0, 20480, False, w1, 8), (20480, 0, True, w2, 64)):
        x = [lds_read_c(k, P, rd, src + 640 * m) for m in range(8)]
        k.I("s_waitcnt lgkmcnt(0)")
        if tw:
            for m in range(1, 8):
                wr, wi = F.twiddle(kf, m / 64)
                x[m] = F.twv(x[m], wr, wi)
                P.f(wr, wi)
        X = F.dft(x, 1)
        for m in range(8):
            lds_write_c(k, P, wb, dst + wstep * m, X[m])
        k.I("s_waitcnt lgkmcnt(0)")
        k.I("s_barrier")
    P.f(vp, vj, vq, vk, rd, w1, w2, kf)
    k.I("s_cmp_ge_u32 s20, 4")
    k.I("s_cbranch_scc1 %s_end" % name)
    a1, jf = P.a(), P.a()
    k.I("v_lshlrev_b32 v%d, 3, v2" % a1)
    k.I("s_mul_i32 s22, s20, 5120")
    k.I("v_add_u32 v%d, s22, v%d" % (a1, a1))
    k.I("v_cvt_f32_u32 v%d, v2" % jf)
    x = [lds_read_c(k, P, a1, 512 * m) for m in range(10)]
    k.I("s_waitcnt lgkmcnt(0)")
    for m in range(1, 10):
        wr, wi = F.twiddle(jf, m / 640)
        x[m] = F.twv(x[m], wr, wi)
        P.f(wr, wi)
    X = F.dft(x, 1)
    P.f(a1, jf)
    k.I("s_waitcnt vmcnt(0)")
    d = P.a()
    for m in range(10):
        c = F.fix(X[m])
        for (y, r) in ((c.r, ra[m]), (c.i, rb[m])):
            bf16r(k, y, d)
            k.I("v_lshlrev_b32 v%d, 16, v%d" % (r, r))
            k.I("v_add_f32 v%d, v%d, v%d" % (r, r, y))
            bf16r(k, r, d)
        F.free(c)
    for m in range(10):
        for (r, off) in ((ra[m], 128 * m), (rb[m], 1280 + 128 * m)):
            k.I("v_lshrrev_b32 v%d, 16, v%d" % (d, r))
            k.I("buffer_store_short v%d, v3, s[32:35], s21 offen offset:%d" % (d, off))
    layernorm_rows(k, [ra, rb], P)
    for m in range(10):
        for (r, off) in ((ra[m], 128 * m), (rb[m], 1280 + 128 * m)):
            k.I("v_lshrrev_b32 v%d, 16, v%d" % (d, r))
            k.I("buffer_store_short v%d, v3, s[36:39], s21 offen offset:%d" % (d, off))
    k.label("%s_end" % name)
    return k


def gen_gemm(name, mode, out_is_dout=False):
    gu = (mode == 'gu')
    NB = 2 if gu else 1
    K = 640 if gu else 1728
    N = 1728 if gu else 640
    lda = K * 2; ldb = N * 2
    BM = 256 if gu else 64
    NW = 8 if gu else 4
    BN, BK, NS = 64, 32, 4
    MT = BM // (16 * NW // 2)
    NTM = 2048 // BM
    NTN = N // BN
    NWG = NTM * NTN
    NIT = K // BK
    XB = BM * 64
    STAGE = XB + NB * 4096
    NXD = BM // (16 * NW)
    NDMA = NXD + 1
    k = Kernel(name)
    GRID = 256 if gu else 320
    k.I("s_cmp_ge_u32 s2, %d" % GRID)
    k.I("s_cbranch_scc1 %s_end" % name)
    k.I("s_and_b32 s47, s2, 7")
    k.I("s_lshr_b32 s48, s2, 3")
    if gu:
        k.I("s_and_b32 s40, s48, 7")
        k.I("s_lshr_b32 s41, s48, 3")
        k.I("s_lshl_b32 s41, s41, 3")
        k.I("s_add_u32 s41, s41, s47")
        k.I("s_cmp_ge_u32 s41, 27")
        k.I("s_cbranch_scc1 %s_end" % name)
    else:
        k.I("s_mul_i32 s40, s48, 6554")
        k.I("s_lshr_b32 s40, s40, 16")
        k.I("s_mul_i32 s41, s40, 10")
        k.I("s_sub_u32 s41, s48, s41")
        k.I("s_lshl_b32 s40, s40, 3")
        k.I("s_add_u32 s40, s40, s47")
    k.I("s_load_dwordx2 s[6:7], s[0:1], 72")
    if gu:
        k.I("s_load_dwordx4 s[16:19], s[0:1], 32")
    else:
        k.I("s_load_dwordx2 s[16:17], s[0:1], 48")
        k.I("s_load_dwordx2 s[18:19], s[0:1], 56")
    k.I("v_lshrrev_b32 v1, 6, v0")
    k.I("v_readfirstlane_b32 s20, v1")
    k.I("v_and_b32 v2, 63, v0")
    k.I("s_waitcnt lgkmcnt(0)")
    k.I("s_mov_b32 s4, s6"); k.I("s_mov_b32 s5, s7")
    add64(k, 4, 5, WS_XN if gu else WS_H)
    srd(k, 8, 4, 5, NB_X if gu else NB_H)
    srd(k, 12, 16, 17, K * N * 2)
    if gu:
        srd(k, 24, 18, 19, K * N * 2)
        k.I("s_mov_b32 s4, s6"); k.I("s_mov_b32 s5, s7")
        add64(k, 4, 5, WS_H)
        srd(k, 28, 4, 5, NB_H)
    else:
        if out_is_dout:
            srd(k, 28, 18, 19, NB_X)
        else:
            k.I("s_mov_b32 s4, s6"); k.I("s_mov_b32 s5, s7")
            add64(k, 4, 5, WS_X2)
            srd(k, 28, 4, 5, NB_X)
        k.I("s_mov_b32 s4, s6"); k.I("s_mov_b32 s5, s7")
        add64(k, 4, 5, WS_XRES)
        srd(k, 24, 4, 5, NB_X)
    k.I("v_lshrrev_b32 v3, 2, v2")
    k.I("v_and_b32 v5, 3, v2")
    k.I("s_mul_i32 s21, s20, %d" % (16 * NXD))
    k.I("s_lshl_b32 s22, s40, %d" % (BM.bit_length() - 1))
    k.I("s_add_u32 s21, s21, s22")
    XO = [10, 11]
    for i in range(NXD):
        k.I("v_add_u32 v7, %d, v3" % (16 * i))
        k.I("v_lshrrev_b32 v6, 3, v7")
        k.I("v_and_b32 v6, 1, v6")
        k.I("v_lshlrev_b32 v6, 1, v6")
        k.I("v_xor_b32 v6, v6, v5")
        k.I("v_lshlrev_b32 v6, 4, v6")
        k.I("v_add_u32 v7, s21, v7")
        k.I("v_mul_u32_u24 v7, %d, v7" % lda)
        k.I("v_add_u32 v%d, v6, v7" % XO[i])
    WO = 14
    k.I("v_lshrrev_b32 v3, 3, v2")
    k.I("v_and_b32 v5, 7, v2")
    k.I("s_and_b32 s21, s20, 3")
    k.I("s_lshl_b32 s21, s21, 3")
    k.I("s_mul_i32 s22, s41, %d" % (BN * 2))
    k.I("v_add_u32 v7, s21, v3")
    k.I("v_lshrrev_b32 v6, 1, v7")
    k.I("v_and_b32 v6, 1, v6")
    k.I("v_lshrrev_b32 v8, 3, v7")
    k.I("v_and_b32 v8, 1, v8")
    k.I("v_lshlrev_b32 v8, 1, v8")
    k.I("v_or_b32 v6, v6, v8")
    k.I("v_lshlrev_b32 v6, 1, v6")
    k.I("v_xor_b32 v6, v6, v5")
    k.I("v_lshlrev_b32 v6, 4, v6")
    k.I("v_mul_u32_u24 v7, %d, v7" % ldb)
    k.I("v_add_u32 v7, v7, v6")
    k.I("v_add_u32 v%d, s22, v7" % WO)
    XA = 16
    k.I("v_and_b32 v3, 15, v2")
    k.I("v_lshrrev_b32 v4, 4, v2")
    k.I("s_lshr_b32 s21, s20, 1")
    k.I("s_mul_i32 s21, s21, %d" % (16 * MT * 64))
    k.I("v_lshrrev_b32 v7, 3, v3")
    k.I("v_lshlrev_b32 v7, 1, v7")
    k.I("v_xor_b32 v6, v4, v7")
    k.I("v_lshlrev_b32 v6, 4, v6")
    k.I("v_lshlrev_b32 v7, 6, v3")
    k.I("v_add_u32 v6, v6, v7")
    k.I("v_add_u32 v%d, s21, v6" % XA)
    WA = [18, 19]
    k.I("s_and_b32 s21, s20, 1")
    k.I("v_lshrrev_b32 v5, 3, v3")
    k.I("v_and_b32 v6, 1, v4")
    k.I("v_lshlrev_b32 v6, 1, v6")
    k.I("v_or_b32 v5, v5, v6")
    k.I("v_lshlrev_b32 v5, 1, v5")
    k.I("v_and_b32 v6, 3, v3")
    k.I("v_lshrrev_b32 v6, 1, v6")
    k.I("s_lshl_b32 s22, s21, 2")
    k.I("v_add_u32 v6, s22, v6")
    k.I("v_lshlrev_b32 v7, 3, v4")
    k.I("v_lshrrev_b32 v8, 2, v3")
    k.I("v_add_u32 v7, v7, v8")
    k.I("v_lshlrev_b32 v7, 7, v7")
    k.I("v_and_b32 v8, 1, v3")
    k.I("v_lshlrev_b32 v8, 3, v8")
    k.I("v_add_u32 v7, v7, v8")
    k.I("v_add_u32 v7, %d, v7" % XB)
    for nt in range(2):
        k.I("v_add_u32 v8, %d, v6" % (2 * nt))
        k.I("v_xor_b32 v8, v8, v5")
        k.I("v_lshlrev_b32 v8, 4, v8")
        k.I("v_add_u32 v%d, v8, v7" % WA[nt])
    for src, dst in ((XA, 15), (WA[0], 12), (WA[1], 13)):
        k.I("v_add_u32 v%d, %d, v%d" % (dst, 2 * STAGE, src))
    ACC = 64
    def acc(b, nt, mt): return ACC + ((b * 2 + nt) * MT + mt) * 4
    NACC = NB * 2 * MT * 4
    for r in range(ACC, ACC + NACC):
        k.I("v_mov_b32 v%d, 0" % r)
    XF = [20, 36]
    WF = [ACC + 128, ACC + 144]
    k.I("s_mul_i32 s42, s20, %d" % (1024 * NXD))
    k.I("s_lshl_b32 s43, s20, 10")
    k.I("s_cmp_ge_u32 s20, 4")
    for q in range(4):
        k.I("s_cselect_b32 s%d, s%d, s%d" % (52 + q, (24 + q) if gu else (12 + q), 12 + q))
    def dma(slot):
        base = slot * STAGE
        for i in range(NXD):
            k.I("s_add_u32 m0, s42, %d" % (base + 1024 * i))
            k.I("s_nop 0")
            k.I("buffer_load_dwordx4 v%d, s[8:11], s44 offen lds" % XO[i])
        k.I("s_add_u32 m0, s43, %d" % (base + XB))
        k.I("s_nop 0")
        k.I("buffer_load_dwordx4 v%d, s[52:55], s45 offen lds" % WO)
        k.I("s_add_u32 s44, s44, %d" % (BK * 2))
        k.I("s_add_u32 s45, s45, %d" % (BK * ldb))
    def reads(slot, fs):
        hi = slot >= 2
        base = (slot - 2 if hi else slot) * STAGE
        xa = 15 if hi else XA
        wa = (12, 13) if hi else WA
        for mt in range(MT):
            r = XF[fs] + 4 * mt
            k.I("ds_read_b128 v[%d:%d], v%d offset:%d" % (r, r + 3, xa, base + 1024 * mt))
        for b in range(NB):
            for nt in range(2):
                r = WF[fs] + (b * 2 + nt) * 4
                for sub in range(2):
                    k.I("ds_read_b64_tr_b16 v[%d:%d], v%d offset:%d" % (r + 2 * sub, r + 2 * sub + 1, wa[nt], base + 4096 * b + 512 * sub))
    def mfmas(fs):
        for b in range(NB):
            for nt in range(2):
                for mt in range(MT):
                    a = acc(b, nt, mt); wf = WF[fs] + (b * 2 + nt) * 4; xf = XF[fs] + 4 * mt
                    k.I("v_mfma_f32_16x16x32_bf16 v[%d:%d], v[%d:%d], v[%d:%d], v[%d:%d]" % (a, a + 3, wf, wf + 3, xf, xf + 3, a, a + 3))
    def iteration(it, slot, do_dma, inflight_after):
        k.I("s_waitcnt vmcnt(%d)" % (inflight_after * NDMA))
        k.I("s_barrier")
        if do_dma: dma((slot + 3) % NS)
        reads(slot, it % 2)
        if it > 0: mfmas((it - 1) % 2)
        k.I("s_waitcnt lgkmcnt(0)")
    k.I("s_mov_b32 s44, 0"); k.I("s_mov_b32 s45, 0")
    for st in range(3): dma(st)
    G = (NIT - 3) // 4
    it = 0
    for j in range(4):
        iteration(it, it % 4, True, 2); it += 1
    k.I("s_mov_b32 s46, 1")
    k.label("%s_loop" % name)
    for j in range(4):
        iteration(it, it % 4, True, 2); it += 1
    k.I("s_add_u32 s46, s46, 1")
    k.I("s_cmp_lt_u32 s46, %d" % G)
    k.I("s_cbranch_scc1 %s_loop" % name)
    it = 4 * G
    while it < NIT:
        do = (it + 3) < NIT
        infl = min(2, NIT - 1 - it)
        iteration(it, it % 4, do, infl); it += 1
    mfmas((NIT - 1) % 2)
    k.nop(10)
    ldo = N * 2
    k.I("s_lshr_b32 s21, s20, 1")
    k.I("s_mul_i32 s21, s21, %d" % (16 * MT))
    k.I("s_lshl_b32 s22, s40, %d" % (BM.bit_length() - 1))
    k.I("s_add_u32 s21, s21, s22")
    k.I("v_add_u32 v5, s21, v3")
    k.I("v_mul_u32_u24 v5, %d, v5" % ldo)
    k.I("s_and_b32 s21, s20, 1")
    k.I("s_lshl_b32 s21, s21, 6")
    k.I("s_mul_i32 s22, s41, %d" % (BN * 2))
    k.I("s_add_u32 s21, s21, s22")
    k.I("v_lshlrev_b32 v6, 3, v4")
    k.I("v_add_u32 v5, v5, v6")
    k.I("v_add_u32 v5, s21, v5")
    if not gu:
        for nt in range(2):
            for mt in range(MT):
                k.I("v_add_u32 v6, %d, v5" % (16 * mt * ldo + 32 * nt))
                k.I("buffer_load_dwordx2 v[%d:%d], v6, s[24:27], 0 offen" % (20 + (nt * MT + mt) * 2, 21 + (nt * MT + mt) * 2))
        k.I("s_waitcnt vmcnt(0)")
    for nt in range(2):
        for mt in range(MT):
            a = acc(0, nt, mt)
            if gu:
                u = acc(1, nt, mt)
                for j in range(4):
                    bf16r(k, a + j, 7); bf16r(k, u + j, 7)
                    k.I("v_mul_f32 v8, 0xbfb8aa3b, v%d" % (a + j))
                    k.I("v_exp_f32 v8, v8")
                    k.I("v_add_f32 v8, 1.0, v8")
                    k.I("v_rcp_f32 v8, v8")
                    k.I("v_mul_f32 v%d, v%d, v8" % (a + j, a + j))
                    bf16r(k, a + j, 7)
                    k.I("v_mul_f32 v%d, v%d, v%d" % (a + j, a + j, u + j))
            else:
                rr = 20 + (nt * MT + mt) * 2
                for j in range(4):
                    bf16r(k, a + j, 7)
                    if j % 2 == 0: k.I("v_lshlrev_b32 v8, 16, v%d" % (rr + j // 2))
                    else: k.I("v_and_b32 v8, 0xffff0000, v%d" % (rr + j // 2))
                    k.I("v_add_f32 v%d, v%d, v8" % (a + j, a + j))
            k.I("v_cvt_pk_bf16_f32 v%d, v%d, v%d" % (a, a, a + 1))
            k.I("v_cvt_pk_bf16_f32 v%d, v%d, v%d" % (a + 1, a + 2, a + 3))
            k.I("v_add_u32 v6, %d, v5" % (16 * mt * ldo + 32 * nt))
            k.I("buffer_store_dwordx2 v[%d:%d], v6, s[28:31], 0 offen" % (a, a + 1))
    k.label("%s_end" % name)
    return k, GRID, NS * STAGE

def assemble(kernels_launch):
    hdr = open('interleave_layers__spectral_gfnet__glu_gated_swiglu__prompt.s.ref').read().split('\n')
    head = [l for l in hdr[:11]]
    out = head[:]
    for (k, grid, block, lds) in kernels_launch:
        out.append("; @launch kernel=%s grid=(%d,1,1) block=(%d,1,1) lds=%d" % (k.name, grid, block, lds))
    out.append('.amdgcn_target "amdgcn-amd-amdhsa--gfx950"')
    out.append(".text")
    descs = []
    seen = set()
    for (k, grid, block, lds) in kernels_launch:
        if k.name in seen: continue
        seen.add(k.name)
        t, d = k.text()
        out.append(t); descs.append(d)
    out.append('.section .rodata,"a"')
    for d in descs:
        out.append(".p2align 6"); out.append(d)
    return "\n".join(out) + "\n"

def full_list():
    L = []
    for lay in (0, 1):
        sfx = "ab"[lay]
        L.append((gen_k1("k1%s_kernel" % sfx, lay == 1), 256, 320, 40960))
        L.append((gen_k2("k2%s_kernel" % sfx), 321, 256, 32768))
        L.append((gen_k3("k3%s_kernel" % sfx, lay == 1), 256, 320, 40960))
        g4, n4, l4 = gen_gemm("k4%s_kernel" % sfx, "gu"); L.append((g4, n4, 512, l4))
        g5, n5, l5 = gen_gemm("k5%s_kernel" % sfx, "dn", out_is_dout=(lay == 1)); L.append((g5, n5, 256, l5))
    return L

if __name__ == "__main__":
    open(sys.argv[1] if len(sys.argv) > 1 else 't.s', 'w').write(assemble(full_list()))
```
